```python
import torch

def _softmax(x, axis=-1):
    return torch.softmax(x, dim=axis)
def _gelu(x):
    return torch.nn.functional.gelu(x, approximate="tanh")
def _silu(x):
    return torch.nn.functional.silu(x)
def _sigmoid(x):
    return torch.sigmoid(x)
def _layernorm(x, axis=-1, eps=1e-5):
    m = x.mean(dim=axis, keepdim=True)
    v = x.var(dim=axis, keepdim=True, unbiased=False)
    return (x - m) / torch.sqrt(v + eps)
def _scatter_add(tgt, idx, src, axis=0):
    return tgt.clone().index_add_(axis, idx, src)
def _segment_sum(src, seg, n):
    out = torch.zeros((n,) + src.shape[1:], dtype=src.dtype)
    return out.index_add_(0, seg, src)
def _pad(x, pw):
    flat = tuple(v for pair in reversed(pw) for v in pair)
    return torch.nn.functional.pad(x, flat)

kernel_name = 'recurrent_scan__sliding_block_cached__glu_gated_reglu__decode'

def setup_inputs():

    _w = (lambda a: (lambda t: t.to(torch.bfloat16) if t.is_floating_point() else t)(torch.as_tensor(a)))
    def _A_setup():
        B, Sq, D = 2, 1, 576
        Hq, Hkv, Sk, Dh = 32, 16, 32768, 128
        assert Hq % Hkv == 0, (Hq, Hkv)
        return {
            "x": _w((lambda *s: torch.randn(*s, dtype=torch.bfloat16) * 0.2)(B, Sq, D)),
            "k_cache": _w((lambda *s: torch.randn(*s, dtype=torch.bfloat16) * 1.6)(B, Hkv, Sk, Dh)),
            "v_cache": _w((lambda *s: torch.randn(*s, dtype=torch.bfloat16) * 1.6)(B, Hkv, Sk, Dh)),
            "wq": _w((lambda *s: torch.randn(*s, dtype=torch.bfloat16) * 1.6)(D, Hq * Dh) * (D ** -0.5)),
            "wo": _w((lambda *s: torch.randn(*s, dtype=torch.bfloat16) * 1.6)(Hq * Dh, D) * ((Hq * Dh) ** -0.5)),
        }
    _A_in = _A_setup()

    def _B_setup():
        B, S, D, F = 2, 1, 576, 4608
        return {
            "x": _w((lambda *s: torch.randn(*s, dtype=torch.bfloat16) * 0.2)(B, S, D)),
            "W_gate": _w((lambda *s: torch.randn(*s, dtype=torch.bfloat16) * 0.8)(D, F) * (2.0 / D) ** 0.5),
            "W_up": _w((lambda *s: torch.randn(*s, dtype=torch.bfloat16) * 0.8)(D, F) * (2.0 / D) ** 0.5),
            "W_down": _w((lambda *s: torch.randn(*s, dtype=torch.bfloat16) * 0.8)(F, D) * (1.0 / F) ** 0.5),
        }
    _B_in = _B_setup()

    return {
        "A_x": _A_in["x"],
        "A_k_cache": _A_in["k_cache"],
        "A_v_cache": _A_in["v_cache"],
        "A_wq": _A_in["wq"],
        "A_wo": _A_in["wo"],
        "B_x": _B_in["x"],
        "B_W_gate": _B_in["W_gate"],
        "B_W_up": _B_in["W_up"],
        "B_W_down": _B_in["W_down"],
    }

def reference(A_x, A_k_cache, A_v_cache, A_wq, A_wo, B_x, B_W_gate, B_W_up, B_W_down):
    def _A_ref(x, k_cache, v_cache, wq, wo):
        B, Sq, D = x.shape
        Hq, Dh = 32, 128
        Hkv, Sk = k_cache.shape[1], k_cache.shape[2]
        W = min(4096, max(256, Sk // 4))
        rep = Hq // Hkv
        q = (lambda x, *d: x.permute(*d))((x @ wq).reshape(B, Sq, Hq, Dh), 0, 2, 1, 3)
        k = (lambda x, n, axis: torch.repeat_interleave(x, n, dim=axis))(k_cache[:, :, Sk - W:, :], rep, axis=1)
        v = (lambda x, n, axis: torch.repeat_interleave(x, n, dim=axis))(v_cache[:, :, Sk - W:, :], rep, axis=1)
        scores = torch.einsum("bhqd,bhkd->bhqk", q, k) * (Dh ** -0.5)
        p = _softmax(scores, axis=-1)
        o = torch.einsum("bhqk,bhkd->bhqd", p, v)
        return (lambda x, *d: x.permute(*d))(o, 0, 2, 1, 3).reshape(B, Sq, Hq * Dh) @ wo

    def _B_ref(x, W_gate, W_up, W_down):
        gate = torch.einsum("bsd,df->bsf", x, W_gate)
        up = torch.einsum("bsd,df->bsf", x, W_up)
        gate = gate * (lambda x, dt: x.to(dt))(gate > 0, gate.dtype)
        h = gate * up
        return torch.einsum("bsf,fd->bsd", h, W_down)

    x = A_x
    xn = _layernorm(x, axis=-1)
    s = _A_ref(xn, A_k_cache, A_v_cache, A_wq, A_wo)
    g = _silu(_B_ref(xn, B_W_gate, B_W_up, B_W_down))
    return x + s * g
```

```python
NAME = "recurrent_scan__sliding_block_cached__glu_gated_reglu__decode"
class Asm:
    def __init__(self):
        self.lines = []
    def __call__(self, s):
        for l in s.strip("\n").split("\n"):
            self.lines.append("    " + l.strip() if not l.strip().endswith(":") else l.strip())
    def label(self, s):
        self.lines.append(s + ":")
    def text(self):
        return "\n".join(self.lines) + "\n"

HEADER_COMMENT = """; Kernarg layout (96 bytes, ptrs only, base s[0:1]):
"""
def wrap(body, grid, block, lds, vgpr, agpr=0, sgpr=102, name=NAME + "_kernel"):
    acc = (vgpr + 3) // 4 * 4
    nfv = acc + agpr if agpr else vgpr
    return f"""{HEADER_COMMENT}; @launch grid=({grid},1,1) block=({block},1,1) lds={lds}
.amdgcn_target "amdgcn-amd-amdhsa--gfx950"
.text
.globl {name}
.p2align 8
.type {name},@function
{name}:
{body}
.section .rodata,"a"
.p2align 6
.amdhsa_kernel {name}
  .amdhsa_next_free_vgpr {nfv}
  .amdhsa_next_free_sgpr {sgpr}
  .amdhsa_accum_offset {acc}
  .amdhsa_group_segment_fixed_size 0
  .amdhsa_kernarg_size 96
  .amdhsa_user_sgpr_count 2
  .amdhsa_user_sgpr_kernarg_segment_ptr 1
  .amdhsa_system_sgpr_workgroup_id_x 1
  .amdhsa_float_denorm_mode_32 3
  .amdhsa_float_denorm_mode_16_64 3
.end_amdhsa_kernel
"""
```

```python
import sys
from asmlib import *

ZB = 0x0
ZBS = 26624
OB = 0x10000
PB = 0x90000
STAMP_OFF = 0x1000000
L_CNT = 0
L_Q = 64
L_ML = 640
L_XN = 1024
XNS = 592 * 4
L_P3 = L_XN + 2 * XNS
P3S = 400 * 4
L_S1 = L_P3 + 2 * P3S
L_S3 = L_S1 + 4096
L_SA = L_S3 + 4096
LDS_SIZE = L_SA + 8192
assert L_S1 % 16 == 0
BOUND = 400000
LOG2E = 0x3fb8aa3b
SCALE = 0x3db504f3

def gen(stamps=False, rotmul=5, order="ab", pre_p1=8, nt=True):
    a = Asm()
    NT = " nt" if nt else ""
    uid = [0]
    def L(p="L"):
        uid[0] += 1
        return f"{p}_{uid[0]}"
    def STAMP(n):
        if stamps: a(f"s_memrealtime s[{80+2*n}:{81+2*n}]")
    def srd(d, b, n):
        a(f"s_mov_b32 s{d}, s{b}\ns_mov_b32 s{d+1}, s{b+1}\ns_mov_b32 s{d+2}, {n}\ns_mov_b32 s{d+3}, 0x20000")
    def lds_flag_wait(off):
        l, d = L("LW"), L("LD")
        a(f"""
        s_mov_b32 s60, {BOUND}
        {l}:
        ds_read_b32 v10, v9 offset:{off}
        s_waitcnt lgkmcnt(0)
        v_readfirstlane_b32 s61, v10
        s_cmp_lg_u32 s61, 0
        s_cbranch_scc1 {d}
        s_sleep 2
        s_sub_u32 s60, s60, 1
        s_cbranch_scc0 {l}
        {d}:
        """)
    def arrive(off, last, notlast_label):
        a(f"""
        s_waitcnt lgkmcnt(0)
        s_mov_b64 exec, 1
        v_mov_b32 v11, 1
        ds_add_rtn_u32 v10, v9, v11 offset:{off}
        s_waitcnt lgkmcnt(0)
        s_mov_b64 exec, -1
        v_readfirstlane_b32 s61, v10
        s_cmp_lg_u32 s61, {last}
        s_cbranch_scc1 {notlast_label}
        """)
    M = 12
    def tile_compute(nblk, wreg, xreg, tab_v, tab_off, younger, acc0, acc1, A0, A1):
        for u in range(nblk):
            a(f"ds_read_b128 v[{xreg+4*u}:{xreg+4*u+3}], v{tab_v} offset:{tab_off + 64*u}")
        a("s_waitcnt lgkmcnt(0)")
        nl = 2 * nblk
        for n in range(nl):
            u, k = n // 2, n % 2
            for rho, A in ((0, A0), (1, A1)):
                for d in range(4):
                    a(f"v_and_b32 v{A+d}, v{xreg+4*u+2*k+rho}, v{M+d}")
            if younger is not None:
                a(f"s_waitcnt vmcnt({nl-1-n+younger})")
            else:
                a("s_nop 0")
            w = wreg + 4 * n
            c0 = "0" if n == 0 else f"v[{acc0}:{acc0+3}]"
            c1 = "0" if n == 0 else f"v[{acc1}:{acc1+3}]"
            a(f"v_mfma_f32_16x16x32_bf16 v[{acc0}:{acc0+3}], v[{A0}:{A0+3}], v[{w}:{w+3}], {c0}")
            a(f"v_mfma_f32_16x16x32_bf16 v[{acc1}:{acc1+3}], v[{A1}:{A1+3}], v[{w}:{w+3}], {c1}")
    def tile_reduce(acc0, acc1, T, slot_off, cnt_off, notlast):
        a("s_nop 7")
        for i in range(4):
            a(f"v_cndmask_b32 v{T+4+i}, v{acc1+i}, v{acc0+i}, s[52:53]")
        for i in range(4):
            a(f"v_add_f32_dpp v{T+i}, v{T+4+i}, v{T+4+i} row_ror:8 row_mask:0xf bank_mask:0xf")
        a(f"ds_write_b128 v8, v[{T}:{T+3}] offset:{slot_off}")
        arrive(cnt_off, 3, notlast)
        for w in range(4):
            a(f"ds_read_b128 v[{T+4+4*w}:{T+7+4*w}], v7 offset:{slot_off + 1024*w}")
        a("s_waitcnt lgkmcnt(0)")
        for i in range(4):
            a(f"v_add_f32 v{T+i}, v{T+4+i}, v{T+8+i}")
            a(f"v_add_f32 v{T+12+i}, v{T+12+i}, v{T+16+i}")
        for i in range(4):
            a(f"v_add_f32 v{T+i}, v{T+i}, v{T+12+i}")

    a(f"""
    s_cmp_ge_u32 s2, 256
    s_cbranch_scc1 L_end
    """)
    if stamps:
        for i in range(80, 100): a(f"s_mov_b32 s{i}, 0")
    STAMP(0)
    a(f"""
    s_load_dwordx16 s[4:19], s[0:1], 0
    s_load_dwordx8 s[20:27], s[0:1], 64
    v_lshrrev_b32 v1, 6, v0
    v_and_b32 v2, 63, v0                ; lane
    v_readfirstlane_b32 s3, v1
    v_lshrrev_b32 v3, 4, v2             ; g
    v_and_b32 v4, 15, v2                ; r
    v_and_b32 v5, 7, v2                 ; e'
    v_lshrrev_b32 v6, 1, v5
    v_and_b32 v7, 1, v5
    v_lshlrev_b32 v7, 4, v7
    v_mov_b32 v8, 0xffff
    v_lshlrev_b32 v8, v7, v8
    v_cmp_eq_u32 s[52:53], 0, v6
    v_cmp_eq_u32 s[54:55], 1, v6
    v_cmp_eq_u32 s[56:57], 2, v6
    v_cmp_eq_u32 s[58:59], 3, v6
    v_mov_b32 v9, 0
    v_cndmask_b32 v12, 0, v8, s[52:53]
    v_cndmask_b32 v13, 0, v8, s[54:55]
    v_cndmask_b32 v14, 0, v8, s[56:57]
    v_cndmask_b32 v15, 0, v8, s[58:59]
    v_lshlrev_b32 v7, 4, v2             ; lane*16
    v_cmp_gt_u32 s[52:53], 8, v4        ; r < 8
    s_lshr_b32 s62, s2, 3               ; pair
    s_and_b32 s63, s2, 7                ; split
    s_waitcnt lgkmcnt(0)
    """)
    srd(28, 26, 0x40000000)
    srd(44, 4, 2304)
    a("""
    s_cmp_ge_u32 s3, 4
    s_cbranch_scc1 L_attn
    """)
    a(f"""
    s_setprio 3
    s_lshl_b32 s64, s3, 10
    v_add_u32 v8, s64, v7               ; w*1024 + lane*16
    s_sub_u32 s65, 255, s2              ; t3
    """)
    srd(32, 24, 256)
    a(f"""
    s_cmp_lg_u32 s3, 0
    s_cbranch_scc1 L_h_noclear
    v_mov_b32 v16, -1
    v_mov_b32 v17, -1
    v_mov_b32 v18, -1
    v_mov_b32 v19, -1
    v_mov_b32 v20, 0
    v_mov_b32 v21, 0
    v_mov_b32 v22, 0
    v_mov_b32 v23, 0
    ds_write_b128 v9, v[20:23] offset:{L_CNT}
    s_lshl_b32 s66, s2, 11
    s_add_u32 s66, s66, {OB}
    v_lshlrev_b32 v24, 3, v2
    v_lshlrev_b32 v25, 2, v2
    s_lshl_b32 s67, s65, 9
    s_add_u32 s67, s67, {PB}
    buffer_store_dwordx4 v[16:19], v7, s[28:31], s66 offen sc1
    buffer_store_dword v16, v25, s[28:31], s66 offen offset:1024 sc1
    buffer_store_dwordx2 v[16:17], v24, s[28:31], s67 offen sc1
    L_h_noclear:
    s_cmp_ge_u32 s2, 208
    s_cbranch_scc1 L_h_light
    v_lshrrev_b32 v20, 5, v2
    v_and_b32 v21, 31, v2
    v_mul_u32_u24 v22, 1152, v20
    v_mul_u32_u24 v23, 36, v21
    v_add_u32 v22, v22, v23
    buffer_load_dwordx4 v[140:143], v22, s[44:47], 0 offen
    buffer_load_dwordx4 v[144:147], v22, s[44:47], 0 offen offset:16
    buffer_load_dword v148, v22, s[44:47], 0 offen offset:32
    s_mov_b32 s36, s10
    s_mov_b32 s37, s11
    s_mov_b32 s38, {576*4096*2}
    s_mov_b32 s68, 8192
    s_mov_b32 s69, s2
    s_cmp_lt_u32 s2, 64
    s_cbranch_scc1 L_p1sel
    s_mov_b32 s36, s16
    s_mov_b32 s37, s17
    s_mov_b32 s38, {576*4608*2}
    s_mov_b32 s68, 9216
    s_sub_u32 s69, s2, 64
    s_cmp_lt_u32 s2, 136
    s_cbranch_scc1 L_p1sel
    s_mov_b32 s36, s18
    s_mov_b32 s37, s19
    s_sub_u32 s69, s2, 136
    L_p1sel:
    s_mov_b32 s39, 0x20000
    v_lshrrev_b32 v24, 3, v4            ; rho
    v_lshl_add_u32 v24, v3, 2, v24      ; 4g + rho
    v_mul_lo_u32 v25, v24, s68
    v_lshl_add_u32 v25, v5, 4, v25      ; + (r&7)*16      -> vA
    s_lshl_b32 s70, s68, 1
    v_add_u32 v26, s70, v25
    s_lshl_b32 s69, s69, 7
    s_mul_i32 s70, s3, 144
    s_mul_i32 s70, s70, s68
    s_add_u32 s69, s69, s70             ; soffset
    s_lshl_b32 s70, s68, 4              ; 16 rows
    """)
    W1 = 32
    for n in range(18):
        if n == pre_p1:
            a("s_waitcnt lgkmcnt(0)\ns_barrier")
        a(f"buffer_load_dwordx4 v[{W1+4*n}:{W1+4*n+3}], v{25 + (n & 1)}, s[36:39], s69 offen{NT}")
        if n & 1: a("s_add_u32 s69, s69, s70")
    STAMP(1)
    X = 104
    a("s_waitcnt vmcnt(18)")
    for i in range(9):
        a(f"v_lshlrev_b32 v{X+2*i}, 16, v{140+i}")
        a(f"v_and_b32 v{X+2*i+1}, 0xffff0000, v{140+i}")
    def red32(v, t):
        for mode in ("quad_perm:[1,0,3,2]", "quad_perm:[2,3,0,1]", "row_half_mirror", "row_mirror"):
            a("s_nop 1")
            a(f"v_add_f32_dpp v{v}, v{v}, v{v} {mode} row_mask:0xf bank_mask:0xf")
        a(f"v_mov_b32 v{t}, v{v}")
        a("s_nop 1")
        a(f"v_permlane16_swap_b32 v{v}, v{t}")
        a("s_nop 1")
        a(f"v_add_f32 v{v}, v{v}, v{t}")
    a(f"v_add_f32 v122, v{X}, v{X+1}")
    for i in range(2, 18):
        a(f"v_add_f32 v122, v122, v{X+i}")
    red32(122, 123)
    import struct
    f2u = lambda f: struct.unpack("<I", struct.pack("<f", f))[0]
    a(f"v_mul_f32 v122, {hex(f2u(1.0/576))}, v122       ; mean (f32)")
    a(f"v_sub_f32 v124, v{X}, v122")
    a(f"v_mul_f32 v125, v124, v124")
    for i in range(1, 18):
        a(f"v_sub_f32 v124, v{X+i}, v122")
        a(f"v_fmac_f32 v125, v124, v124")
    red32(125, 123)
    a(f"""
    v_mul_f32 v125, {hex(f2u(1.0/576))}, v125       ; var (f32)
    v_cvt_pk_bf16_f32 v122, v122, v125
    v_and_b32 v125, 0xffff0000, v122
    v_lshlrev_b32 v122, 16, v122
    v_add_f32 v125, {hex(f2u(1e-5))}, v125
    v_cvt_pk_bf16_f32 v125, v125, v125
    v_and_b32 v125, 0xffff0000, v125
    v_sqrt_f32 v125, v125
    s_nop 0
    v_cvt_pk_bf16_f32 v125, v125, v125
    v_and_b32 v125, 0xffff0000, v125
    v_rcp_f32 v125, v125
    """)
    for i in range(18):
        a(f"v_sub_f32 v{X+i}, v{X+i}, v122")
    for i in range(9):
        a(f"v_cvt_pk_bf16_f32 v{140+i}, v{X+2*i}, v{X+2*i+1}")
    for i in range(9):
        a(f"v_lshlrev_b32 v{X+2*i}, 16, v{140+i}")
        a(f"v_and_b32 v{X+2*i+1}, 0xffff0000, v{140+i}")
    for i in range(18):
        a(f"v_mul_f32 v{X+i}, v{X+i}, v125")
    for i in range(18):
        a(f"v_cvt_pk_bf16_f32 v{X+i}, v{X+i}, v{X+i}")
    a(f"""
    v_mul_u32_u24 v22, {XNS}, v20
    v_mul_u32_u24 v23, 72, v21
    v_add_u32 v22, v22, v23
    """)
    for i in range(9):
        a(f"ds_write_b64 v22, v[{X+2*i}:{X+2*i+1}] offset:{L_XN + 8*i}")
    a(f"""
    v_lshrrev_b32 v27, 3, v4            ; b = r>>3
    v_mul_u32_u24 v28, {XNS}, v27
    v_lshl_add_u32 v28, v3, 4, v28
    s_mul_i32 s70, s3, {144*4}
    v_add_u32 v28, s70, v28
    s_waitcnt lgkmcnt(0)
    """)
    tile_compute(9, W1, 104, 28, L_XN, 0, 16, 20, 140, 144)
    STAMP(2)
    tile_reduce(16, 20, 104, L_S1, 4, "L_h_p1done")
    a(f"""
    v_cvt_pk_bf16_f32 v104, v104, v105
    v_cvt_pk_bf16_f32 v105, v106, v107
    v_lshrrev_b32 v20, 1, v3            ; b = g>>1
    v_and_b32 v21, 1, v3
    v_mul_u32_u24 v22, {ZBS}, v20
    v_lshl_add_u32 v22, v4, 4, v22      ; + r*16
    v_lshl_add_u32 v22, v21, 3, v22     ; + (g&1)*8
    s_lshl_b32 s70, s2, 7
    s_add_u32 s70, s70, {ZB}
    s_mov_b64 exec, s[52:53]
    buffer_store_dwordx2 v[104:105], v22, s[28:31], s70 offen sc1
    s_mov_b64 exec, -1
    s_branch L_h_flag
    L_h_light:
    s_waitcnt lgkmcnt(0)
    s_barrier
    s_cmp_lg_u32 s3, 0
    s_cbranch_scc1 L_h_p1done
    L_h_flag:
    s_waitcnt vmcnt(0)
    v_mov_b32 v20, 1
    s_mov_b64 exec, 1
    buffer_store_byte v20, v9, s[32:35], s2 offen sc1
    s_mov_b64 exec, -1
    L_h_p1done:
    """)
    STAMP(3)
    a(f"""
    s_cmp_lg_u32 s3, 0
    s_cbranch_scc1 L_h_waitflag
    v_lshlrev_b32 v20, 2, v2
    s_mov_b32 s60, {BOUND}
    s_mov_b32 s61, 0x01010101
    L_poll_flags:
    buffer_load_dword v21, v20, s[32:35], 0 offen sc1
    s_waitcnt vmcnt(0)
    v_cmp_ne_u32 vcc, s61, v21
    s_cbranch_vccz L_flags_ok
    s_sleep 8
    s_sub_u32 s60, s60, 1
    s_cbranch_scc0 L_poll_flags
    L_flags_ok:
    s_lshr_b32 s70, s62, 4              ; b
    s_mul_i32 s70, s70, {ZBS}
    s_and_b32 s71, s62, 15              ; hkv
    s_lshl_b32 s71, s71, 9
    s_add_u32 s70, s70, s71
    s_add_u32 s70, s70, {ZB}
    v_and_b32 v20, 0x1f0, v7            ; (lane&31)*16
    buffer_load_dwordx4 v[24:27], v20, s[28:31], s70 offen sc1
    s_waitcnt vmcnt(0)
    ds_write_b128 v20, v[24:27] offset:{L_Q}
    v_mov_b32 v21, 1
    s_waitcnt lgkmcnt(0)
    ds_write_b32 v9, v21 offset:{L_CNT+12}
    s_branch L_h_p3
    L_h_waitflag:
    """)
    lds_flag_wait(L_CNT + 12)
    a("L_h_p3:")
    STAMP(4)
    a(f"""
    s_cmp_ge_u32 s65, 252
    s_cbranch_scc1 L_fin
    v_lshrrev_b32 v24, 3, v4            ; rho / b
    v_lshl_add_u32 v25, v3, 2, v24      ; 4g + rho
    v_mul_u32_u24 v25, 1152, v25
    v_lshl_add_u32 v25, v5, 4, v25      ; vA
    v_mul_u32_u24 v28, {P3S}, v24
    v_lshl_add_u32 v28, v3, 4, v28
    s_cmp_ge_u32 s65, 108
    s_cbranch_scc1 L_h_wo
    ; =========== D tile ===========
    s_mul_i32 s66, s65, 171
    s_lshr_b32 s66, s66, 11             ; c
    s_mul_i32 s67, s66, 12
    s_sub_u32 s67, s65, s67             ; j'
    s_mul_i32 s67, s67, 384
    s_mul_i32 s68, s3, 96
    s_add_u32 s67, s67, s68             ; R0
    s_lshl_b32 s68, s68, 2
    v_add_u32 v28, s68, v28
    v_lshrrev_b32 v20, 5, v2
    v_and_b32 v21, 31, v2
    v_mul_u32_u24 v22, {ZBS}, v20
    v_lshl_add_u32 v22, v21, 3, v22
    s_lshl_b32 s69, s67, 1
    s_add_u32 s69, s69, {ZB + 4096*2}
    s_add_u32 s70, s69, {4608*2}
    buffer_load_dwordx2 v[32:33], v22, s[28:31], s69 offen sc1
    buffer_load_dwordx2 v[34:35], v22, s[28:31], s70 offen sc1
    """)
    srd(40, 20, 576*4608*2)
    a(f"""
    s_mul_i32 s67, s67, 1152
    s_lshl_b32 s66, s66, 7
    s_add_u32 s67, s67, s66
    v_mul_u32_u24 v23, {P3S}, v20
    v_lshl_add_u32 v23, v21, 4, v23
    v_add_u32 v23, s68, v23
    v_cmp_gt_u32 s[54:55], 24, v21
    s_waitcnt vmcnt(0)
    v_lshlrev_b32 v36, 16, v32
    v_and_b32 v37, 0xffff0000, v32
    v_lshlrev_b32 v38, 16, v33
    v_and_b32 v39, 0xffff0000, v33
    v_lshlrev_b32 v40, 16, v34
    v_and_b32 v41, 0xffff0000, v34
    v_lshlrev_b32 v42, 16, v35
    v_and_b32 v43, 0xffff0000, v35
    v_cmp_lt_f32 s[56:57], 0, v36
    v_cmp_lt_f32 s[58:59], 0, v37
    v_cmp_lt_f32 s[72:73], 0, v38
    v_cmp_lt_f32 s[74:75], 0, v39
    s_nop 0
    v_cndmask_b32 v44, 0, 1.0, s[56:57]
    v_cndmask_b32 v45, 0, 1.0, s[58:59]
    v_cndmask_b32 v46, 0, 1.0, s[72:73]
    v_cndmask_b32 v47, 0, 1.0, s[74:75]
    """)
    for i in range(4):
        a(f"v_mul_f32 v{36+i}, v{36+i}, v{44+i}")
    for i in range(4):
        a(f"v_mul_f32 v{36+i}, v{36+i}, v{40+i}")
    for i in range(4):
        a(f"v_cvt_pk_bf16_f32 v{36+i}, v{36+i}, v{36+i}")
    a(f"""
    s_mov_b64 exec, s[54:55]
    ds_write_b128 v23, v[36:39] offset:{L_P3}
    s_mov_b64 exec, -1
    s_setprio 0
    """)
    W3 = 104
    for n in range(12):
        a(f"buffer_load_dwordx4 v[{W3+4*n}:{W3+4*n+3}], v25, s[40:43], s67 offen offset:{2304*(n&1)}{NT}")
        if n & 1: a("s_add_u32 s67, s67, 18432")
    a("s_setprio 3")
    STAMP(5)
    a("s_waitcnt lgkmcnt(0)")
    tile_compute(6, W3, 48, 28, L_P3, 0, 16, 20, 32, 36)
    a("s_branch L_h_p3fin")
    a(f"""
    L_h_wo:
    s_sub_u32 s66, s65, 108
    s_and_b32 s67, s66, 15              ; j (hkv)
    s_lshr_b32 s66, s66, 4              ; c
    s_lshl_b32 s68, s3, 8               ; w*64*4
    v_add_u32 v28, s68, v28
    """)
    srd(40, 12, 576*4096*2)
    a(f"""
    s_lshl_b32 s69, s67, 8
    s_lshl_b32 s70, s3, 6
    s_add_u32 s69, s69, s70             ; R0
    s_mul_i32 s69, s69, 1152
    s_lshl_b32 s66, s66, 7
    s_add_u32 s69, s69, s66
    s_setprio 0
    """)
    for n in range(8):
        a(f"buffer_load_dwordx4 v[{W3+4*n}:{W3+4*n+3}], v25, s[40:43], s69 offen offset:{2304*(n&1)}{NT}")
        if n & 1: a("s_add_u32 s69, s69, 18432")
    a("s_setprio 3")
    STAMP(5)
    a(f"""
    v_lshlrev_b32 v20, 11, v3           ; g*2048
    v_lshl_add_u32 v20, v4, 4, v20      ; + r*16
    s_lshl_b32 s70, s67, 14             ; j*8*2048
    s_add_u32 s70, s70, {OB}
    s_add_u32 s71, s70, s68             ; + w*256   (m=0)
    s_add_u32 s72, s71, {4*2048}        ; m=1
    s_add_u32 s73, s71, {128*2048}      ; m=2
    s_add_u32 s74, s73, {4*2048}        ; m=3
    v_add_u32 v21, v4, v3
    v_and_b32 v21, 3, v21
    v_and_b32 v22, 4, v4
    v_or_b32 v21, v21, v22              ; split
    v_lshlrev_b32 v21, 11, v21
    v_lshl_add_u32 v21, v24, 18, v21    ; + b*128*2048
    s_lshr_b32 s75, s3, 1               ; head
    s_lshl_b32 s75, s75, 3
    s_add_u32 s75, s75, s70
    v_lshrrev_b32 v22, 1, v3
    v_mul_u32_u24 v22, {P3S}, v22
    v_lshl_add_u32 v22, v4, 4, v22
    v_and_b32 v23, 1, v3
    v_lshl_add_u32 v22, v23, 3, v22
    v_add_u32 v22, s68, v22
    s_mov_b32 s60, {BOUND}
    L_poll_o:
    buffer_load_dwordx2 v[48:49], v21, s[28:31], s75 offen offset:1024 sc1
    buffer_load_dwordx4 v[32:35], v20, s[28:31], s71 offen sc1
    buffer_load_dwordx4 v[36:39], v20, s[28:31], s72 offen sc1
    buffer_load_dwordx4 v[40:43], v20, s[28:31], s73 offen sc1
    buffer_load_dwordx4 v[44:47], v20, s[28:31], s74 offen sc1
    s_waitcnt vmcnt(0)
    v_max3_u32 v50, v32, v33, v34
    v_max3_u32 v51, v35, v36, v37
    v_max3_u32 v52, v38, v39, v40
    v_max3_u32 v53, v41, v42, v43
    v_max3_u32 v54, v44, v45, v46
    v_max3_u32 v55, v47, v48, v49
    v_max3_u32 v50, v50, v51, v52
    v_max3_u32 v53, v53, v54, v55
    v_max_u32 v50, v50, v53
    v_cmp_eq_u32 vcc, -1, v50
    s_cbranch_vccz L_o_ok
    s_sleep 4
    s_sub_u32 s60, s60, 1
    s_cbranch_scc0 L_poll_o
    L_o_ok:
    """)
    STAMP(6)
    a(f"""
    v_max_f32_dpp v50, v48, v48 quad_perm:[1,0,3,2] row_mask:0xf bank_mask:0xf
    s_nop 1
    v_max_f32_dpp v50, v50, v50 quad_perm:[2,3,0,1] row_mask:0xf bank_mask:0xf
    s_nop 1
    v_max_f32_dpp v50, v50, v50 row_half_mirror row_mask:0xf bank_mask:0xf
    v_sub_f32 v50, v48, v50
    v_exp_f32 v50, v50                  ; e
    s_nop 0
    v_mul_f32 v51, v50, v49             ; e*l
    s_nop 1
    v_add_f32_dpp v51, v51, v51 quad_perm:[1,0,3,2] row_mask:0xf bank_mask:0xf
    s_nop 1
    v_add_f32_dpp v51, v51, v51 quad_perm:[2,3,0,1] row_mask:0xf bank_mask:0xf
    s_nop 1
    v_add_f32_dpp v51, v51, v51 row_half_mirror row_mask:0xf bank_mask:0xf
    v_rcp_f32 v51, v51
    s_nop 0
    v_mul_f32 v50, v50, v51             ; w
    s_nop 1
    """)
    for i in range(4):
        a(f"v_mul_f32_dpp v{52+i}, v50, v{32+i} row_newbcast:0 row_mask:0xf bank_mask:0xf")
    for i in range(4):
        a(f"v_mul_f32_dpp v{56+i}, v50, v{40+i} row_newbcast:8 row_mask:0xf bank_mask:0xf")
    for i in range(4):
        a(f"v_fmac_f32_dpp v{52+i}, v50, v{36+i} row_newbcast:4 row_mask:0xf bank_mask:0xf")
    for i in range(4):
        a(f"v_fmac_f32_dpp v{56+i}, v50, v{44+i} row_newbcast:12 row_mask:0xf bank_mask:0xf")
    a("s_nop 1")
    for i in range(4):
        a(f"v_permlane32_swap_b32 v{52+i}, v{56+i}")
    a("s_nop 0")
    for i in range(4):
        a(f"v_add_f32 v{52+i}, v{52+i}, v{56+i}")
    a(f"""
    s_nop 1
    v_permlane16_swap_b32 v52, v54
    v_permlane16_swap_b32 v53, v55
    s_nop 0
    v_add_f32 v52, v52, v54
    v_add_f32 v53, v53, v55
    v_cvt_pk_bf16_f32 v52, v52, v52
    v_cvt_pk_bf16_f32 v53, v53, v53
    ds_write_b64 v22, v[52:53] offset:{L_P3}
    s_waitcnt lgkmcnt(0)
    """)
    tile_compute(4, W3, 48, 28, L_P3, None, 16, 20, 32, 36)
    a("L_h_p3fin:")
    STAMP(7)
    tile_reduce(16, 20, 64, L_S3, 8, "L_fin")
    a(f"""
    v_lshrrev_b32 v20, 1, v3            ; b
    v_and_b32 v21, 1, v3
    v_lshlrev_b32 v22, 8, v20
    v_lshl_add_u32 v22, v4, 5, v22      ; + r*32
    v_lshl_add_u32 v22, v21, 4, v22     ; + (g&1)*16
    s_lshl_b32 s70, s65, 9
    s_add_u32 s70, s70, {PB}
    v_min_u32 v64, -2, v64
    v_min_u32 v65, -2, v65
    v_min_u32 v66, -2, v66
    v_min_u32 v67, -2, v67
    s_mov_b64 exec, s[52:53]
    buffer_store_dwordx4 v[64:67], v22, s[28:31], s70 offen sc1
    s_mov_b64 exec, -1
    """)
    STAMP(8)
    a("s_branch L_fin")
    Q, K, V, E = 16, 32, 96, 160
    a(f"""
    L_attn:
    s_sub_u32 s64, s3, 4                ; a
    s_setprio 2
    s_cmp_lt_u32 s64, 4
    s_cbranch_scc1 L_attn_hi
    s_setprio 1
    L_attn_hi:
    """)
    srd(36, 6, 0x10000000)
    srd(40, 8, 0x10000000)
    a(f"""
    s_lshl_b32 s65, s62, 23
    s_lshl_b32 s66, s63, 17
    s_add_u32 s65, s65, s66
    s_add_u32 s65, s65, {28672*256}
    v_lshlrev_b32 v10, 8, v4
    v_lshl_add_u32 v10, v3, 4, v10      ; K: r*256 + g*16
    v_lshlrev_b32 v11, 10, v3
    v_lshl_add_u32 v11, v4, 4, v11      ; V: g*1024 + r*16
    s_mul_i32 s66, s2, {rotmul}
    """)
    if order == "inter":
        a("s_add_u32 s66, s66, s64"); tstep = 8
    else:
        a("s_and_b32 s67, s64, 3\ns_add_u32 s66, s66, s67\ns_lshr_b32 s67, s64, 2\ns_lshl_b32 s67, s67, 4\ns_add_u32 s66, s66, s67"); tstep = 4
    for t in range(4):
        a(f"s_add_u32 s67, s66, {t*tstep}\ns_and_b32 s67, s67, 31\ns_lshl_b32 s67, s67, 12\ns_add_u32 s{68+t}, s67, s65")
    a("s_barrier")
    for t in range(4):
        for j in range(4):
            r = K + 16*t + 4*j
            a(f"buffer_load_dwordx4 v[{r}:{r+3}], v10, s[36:39], s{68+t} offen offset:{64*j}{NT}")
    STAMP(1)
    for t in range(4):
        for i in range(4):
            r = V + 16*t + 4*i
            a(f"buffer_load_dwordx4 v[{r}:{r+3}], v11, s[40:43], s{68+t} offen offset:{256*i}{NT}")
    STAMP(2)
    lds_flag_wait(L_CNT + 12)
    STAMP(3)
    a(f"""
    v_lshrrev_b32 v10, 3, v4
    v_lshlrev_b32 v10, 8, v10
    v_lshl_add_u32 v10, v3, 4, v10      ; h*256 + g*16
    """)
    for j in range(4):
        a(f"ds_read_b128 v[{Q+4*j}:{Q+4*j+3}], v10 offset:{L_Q + 64*j}")
    a("s_waitcnt vmcnt(16) lgkmcnt(0)")
    S = [E, E+4, K, K+4]
    for t in range(4):
        for j in range(4):
            r = K + 16*t + 4*j
            c = "0" if j == 0 else f"v[{S[t]}:{S[t]+3}]"
            a(f"v_mfma_f32_16x16x32_bf16 v[{S[t]}:{S[t]+3}], v[{r}:{r+3}], v[{Q+4*j}:{Q+4*j+3}], {c}")
    a(f"s_mov_b32 s72, {hex(SCALE)}\ns_mov_b32 s73, {hex(LOG2E)}")
    a("s_nop 5")
    for t in range(4):
        for p in range(2):
            s0, s1 = S[t] + 2*p, S[t] + 2*p + 1
            d0, d1 = Q + 4*t + 2*p, Q + 4*t + 2*p + 1
            a(f"""
            v_cvt_pk_bf16_f32 v{s0}, v{s0}, v{s1}
            v_and_b32 v{s1}, 0xffff0000, v{s0}
            v_lshlrev_b32 v{s0}, 16, v{s0}
            v_mul_f32 v{s0}, s72, v{s0}
            v_mul_f32 v{s1}, s72, v{s1}
            v_cvt_pk_bf16_f32 v{s0}, v{s0}, v{s1}
            v_and_b32 v{d1}, 0xffff0000, v{s0}
            v_lshlrev_b32 v{d0}, 16, v{s0}
            """)
    a(f"v_max3_f32 v10, v{Q}, v{Q+1}, v{Q+2}")
    for i in range(3, 15, 2):
        a(f"v_max3_f32 v10, v10, v{Q+i}, v{Q+i+1}")
    a(f"""
    v_max_f32 v10, v10, v{Q+15}
    v_mov_b32 v11, v10
    s_nop 1
    v_permlane16_swap_b32 v10, v11
    s_nop 0
    v_max_f32 v10, v10, v11
    v_mov_b32 v11, v10
    s_nop 1
    v_permlane32_swap_b32 v10, v11
    s_nop 0
    v_max_f32 v10, v10, v11
    v_mul_f32 v{E+4}, s73, v10            ; m' = m*log2e
    """)
    for i in range(16):
        a(f"v_fma_f32 v{Q+i}, v{Q+i}, s73, -v{E+4}")
    for i in range(16):
        a(f"v_exp_f32 v{Q+i}, v{Q+i}")
    a(f"v_add_f32 v{E+5}, v{Q}, v{Q+1}")
    for i in range(2, 16):
        a(f"v_add_f32 v{E+5}, v{E+5}, v{Q+i}")
    for i in range(16):
        a(f"v_cvt_pk_bf16_f32 v{Q+i}, v{Q+i}, v{Q+i}")
    for n in range(16):
        for d in range(4):
            a(f"v_and_b32 v{K+4*n+d}, v{Q+n}, v{M+d}")
    a(f"""
    v_mov_b32 v11, v{E+5}
    s_nop 1
    v_permlane16_swap_b32 v{E+5}, v11
    s_nop 0
    v_add_f32 v{E+5}, v{E+5}, v11
    v_mov_b32 v11, v{E+5}
    s_nop 1
    v_permlane32_swap_b32 v{E+5}, v11
    s_nop 0
    v_add_f32 v{E+5}, v{E+5}, v11
    v_lshlrev_b32 v10, 3, v2
    s_lshl_b32 s66, s64, 3
    v_add_u32 v10, s66, v10
    s_mov_b64 exec, 0x101
    ds_write_b64 v10, v[{E+4}:{E+5}] offset:{L_ML}
    s_mov_b64 exec, -1
    s_lshl_b32 s66, s64, 10
    v_add_u32 v8, s66, v7
    """)
    STAMP(4)
    for n in range(16):
        a(f"s_waitcnt vmcnt({15-n})")
        c = "0" if n == 0 else f"v[{E}:{E+3}]"
        a(f"v_mfma_f32_16x16x32_bf16 v[{E}:{E+3}], v[{K+4*n}:{K+4*n+3}], v[{V+4*n}:{V+4*n+3}], {c}")
    STAMP(5)
    a("s_nop 7")
    a(f"ds_write_b128 v8, v[{E}:{E+3}] offset:{L_SA}")
    arrive(L_CNT + 0, 7, "L_fin")
    a(f"""
    v_lshrrev_b32 v10, 1, v3
    v_lshlrev_b32 v10, 6, v10           ; h*64
    """)
    for i in range(4):
        a(f"ds_read_b128 v[{Q+4*i}:{Q+4*i+3}], v10 offset:{L_ML + 16*i}")
    for s in range(8):
        a(f"ds_read_b128 v[{K+4*s}:{K+4*s+3}], v7 offset:{L_SA + 1024*s}")
    a(f"""
    s_lshl_b32 s66, s2, 11
    s_add_u32 s66, s66, {OB}
    v_lshrrev_b32 v10, 1, v3            ; h
    v_lshlrev_b32 v11, 9, v10
    v_lshl_add_u32 v11, v4, 5, v11
    v_and_b32 v8, 1, v3
    v_lshl_add_u32 v11, v8, 4, v11      ; h*512 + r*32 + (g&1)*16
    v_lshlrev_b32 v10, 3, v10           ; h*8
    s_waitcnt lgkmcnt(0)
    v_max3_f32 v{E+4}, v{Q}, v{Q+2}, v{Q+4}
    v_max3_f32 v{E+5}, v{Q+6}, v{Q+8}, v{Q+10}
    v_max3_f32 v{E+4}, v{E+4}, v{Q+12}, v{Q+14}
    v_max_f32 v{E+4}, v{E+4}, v{E+5}
    """)
    for s in range(8):
        a(f"v_sub_f32 v{Q+2*s}, v{Q+2*s}, v{E+4}")
    for s in range(8):
        a(f"v_exp_f32 v{Q+2*s}, v{Q+2*s}")
    for i in range(4):
        a(f"v_mul_f32 v{E+i}, v{Q}, v{K+i}")
    a(f"v_mul_f32 v{E+5}, v{Q}, v{Q+1}")
    for s in range(1, 8):
        for i in range(4):
            a(f"v_fmac_f32 v{E+i}, v{Q+2*s}, v{K+4*s+i}")
        a(f"v_fmac_f32 v{E+5}, v{Q+2*s}, v{Q+2*s+1}")
    for i in range(6):
        a(f"v_min_u32 v{E+i}, -2, v{E+i}")
    a(f"""
    buffer_store_dwordx4 v[{E}:{E+3}], v11, s[28:31], s66 offen sc1
    s_mov_b32 exec_lo, 1
    s_mov_b32 exec_hi, 1
    buffer_store_dwordx2 v[{E+4}:{E+5}], v10, s[28:31], s66 offen offset:1024 sc1
    s_mov_b64 exec, -1
    """)
    STAMP(6)
    a(f"""
    s_cmp_ge_u32 s62, 9
    s_cbranch_scc1 L_fin
    s_cmp_ge_u32 s63, 2
    s_cbranch_scc1 L_fin
    """)
    srd(48, 22, 2304)
    a(f"""
    v_lshlrev_b32 v10, 9, v3
    v_lshl_add_u32 v10, v4, 4, v10      ; g*512 + r*16
    s_lshl_b32 s66, s63, 8
    s_add_u32 s66, s66, {PB}
    s_mul_i32 s67, s62, {12*512}
    s_add_u32 s67, s67, s66             ; D base
    s_lshl_b32 s68, s62, 13
    s_add_u32 s68, s68, s66
    s_add_u32 s68, s68, {108*512}       ; S base
    s_add_u32 s69, s68, 4096
    s_add_u32 s70, s67, 4096
    v_lshl_add_u32 v11, v4, 2, v3
    v_lshlrev_b32 v11, 1, v11
    s_mul_i32 s71, s63, 1152
    s_lshl_b32 s72, s62, 7
    s_add_u32 s71, s71, s72
    buffer_load_ushort v{Q}, v11, s[44:47], s71 offen
    s_mov_b32 s60, {BOUND}
    L_poll_f:
    buffer_load_dwordx4 v[{K}:{K+3}], v10, s[28:31], s67 offen sc1
    buffer_load_dwordx4 v[{K+4}:{K+7}], v10, s[28:31], s67 offen offset:2048 sc1
    buffer_load_dwordx4 v[{K+8}:{K+11}], v10, s[28:31], s70 offen sc1
    buffer_load_dwordx4 v[{K+12}:{K+15}], v10, s[28:31], s68 offen sc1
    buffer_load_dwordx4 v[{K+16}:{K+19}], v10, s[28:31], s68 offen offset:2048 sc1
    buffer_load_dwordx4 v[{K+20}:{K+23}], v10, s[28:31], s69 offen sc1
    buffer_load_dwordx4 v[{K+24}:{K+27}], v10, s[28:31], s69 offen offset:2048 sc1
    s_waitcnt vmcnt(0)
    """)
    for i in range(9):
        a(f"v_max3_u32 v{V+i}, v{K+3*i}, v{K+3*i+1}, v{K+3*i+2}")
    a(f"""
    v_max3_u32 v{V}, v{V}, v{V+1}, v{V+2}
    v_max3_u32 v{V+3}, v{V+3}, v{V+4}, v{V+5}
    v_max3_u32 v{V+6}, v{V+6}, v{V+7}, v{V+8}
    v_max3_u32 v{V}, v{V}, v{V+3}, v{V+6}
    v_max_u32 v{V}, v{V}, v{K+27}
    v_cmp_eq_u32 vcc, -1, v{V}
    s_cbranch_vccz L_f_ok
    s_sleep 2
    s_sub_u32 s60, s60, 1
    s_cbranch_scc0 L_poll_f
    L_f_ok:
    """)
    STAMP(7)
    for i in range(4):
        a(f"v_add_f32 v{K+i}, v{K+i}, v{K+4+i}")
        a(f"v_add_f32 v{K+12+i}, v{K+12+i}, v{K+16+i}")
        a(f"v_add_f32 v{K+20+i}, v{K+20+i}, v{K+24+i}")
    for i in range(4):
        a(f"v_add_f32 v{K+i}, v{K+i}, v{K+8+i}")
        a(f"v_add_f32 v{K+12+i}, v{K+12+i}, v{K+20+i}")
    Dn, Sn = K, K + 12
    a(f"""
    s_nop 1
    v_permlane32_swap_b32 v{Dn}, v{Dn+2}
    v_permlane32_swap_b32 v{Dn+1}, v{Dn+3}
    v_permlane32_swap_b32 v{Sn}, v{Sn+2}
    v_permlane32_swap_b32 v{Sn+1}, v{Sn+3}
    s_nop 0
    v_add_f32 v{Dn}, v{Dn}, v{Dn+2}
    v_add_f32 v{Dn+1}, v{Dn+1}, v{Dn+3}
    v_add_f32 v{Sn}, v{Sn}, v{Sn+2}
    v_add_f32 v{Sn+1}, v{Sn+1}, v{Sn+3}
    s_nop 1
    v_permlane16_swap_b32 v{Dn}, v{Dn+1}
    v_permlane16_swap_b32 v{Sn}, v{Sn+1}
    s_nop 0
    v_add_f32 v{Dn}, v{Dn}, v{Dn+1}
    v_add_f32 v{Sn}, v{Sn}, v{Sn+1}
    v_cvt_pk_bf16_f32 v{Dn}, v{Dn}, v{Sn}
    v_and_b32 v{Sn}, 0xffff0000, v{Dn}     ; s bf16
    v_lshlrev_b32 v{Dn}, 16, v{Dn}         ; d bf16
    v_mul_f32 v{Dn+1}, {hex(LOG2E | 0x80000000)}, v{Dn}
    v_exp_f32 v{Dn+1}, v{Dn+1}
    s_nop 0
    v_add_f32 v{Dn+1}, 1.0, v{Dn+1}
    v_rcp_f32 v{Dn+1}, v{Dn+1}
    s_nop 0
    v_mul_f32 v{Dn}, v{Dn}, v{Dn+1}        ; silu
    v_cvt_pk_bf16_f32 v{Dn}, v{Dn}, v{Dn}
    v_and_b32 v{Dn}, 0xffff0000, v{Dn}
    v_mul_f32 v{Dn}, v{Dn}, v{Sn}
    v_cvt_pk_bf16_f32 v{Dn}, v{Dn}, v{Dn}
    v_and_b32 v{Dn}, 0xffff0000, v{Dn}
    v_lshlrev_b32 v{Q}, 16, v{Q}
    v_add_f32 v{Dn}, v{Dn}, v{Q}
    v_cvt_pk_bf16_f32 v{Dn}, v{Dn}, v{Dn}
    buffer_store_short v{Dn}, v11, s[48:51], s71 offen
    """)
    STAMP(8)
    a("L_fin:")
    if stamps:
        a("s_waitcnt vmcnt(0)")
        STAMP(9)
        a(f"""
        s_waitcnt lgkmcnt(0)
        s_mul_i32 s60, s2, 12
        s_add_u32 s60, s60, s3
        s_mul_i32 s60, s60, 80
        s_add_u32 s60, s60, {STAMP_OFF}
        s_mov_b64 exec, 1
        """)
        for i in range(5):
            for k in range(4):
                a(f"v_mov_b32 v{16+k}, s{80+4*i+k}")
            a(f"buffer_store_dwordx4 v[16:19], v9, s[28:31], s60 offen offset:{16*i}")
            a("s_nop 1")
    a("L_end:\ns_endpgm")
    return wrap(a.text(), 256, 768, LDS_SIZE, 168)

if __name__ == "__main__":
    open("k1.s", "w").write(gen())
    open("k1_st.s", "w").write(gen(stamps=True))
```

```python
import sys
from asmlib import *

ZB = 0x0
ZBS = 32768
OB = 0x10000
PB = 0x90000
STAMP_OFF = 0x1000000
L_CNT = 0
L_Q = 128
L_ML = 640
L_XN = 1024
XNS = 592 * 4
L_P3 = L_XN + 2 * XNS
P3S = 400 * 4
L_S1 = L_P3 + 2 * P3S
L_S3 = L_S1 + 4096
L_SA = L_S3 + 4096
LDS_SIZE = L_SA + 8192
assert L_S1 % 16 == 0
BOUND = 400000
LOG2E = 0x3fb8aa3b
SCALE = 0x3db504f3

def gen(stamps=False, rotmul=5, order="ab", pre_p1=8, nt=True, satomic=True, T=8, sigH=8, sigA=5, T3=8):
    a = Asm()
    NT = " nt" if nt else ""
    uid = [0]
    def L(p="L"):
        uid[0] += 1
        return f"{p}_{uid[0]}"
    def STAMP(n):
        if stamps: a(f"s_memrealtime s[{80+2*n}:{81+2*n}]")
    def srd(d, b, n):
        a(f"s_mov_b32 s{d}, s{b}\ns_mov_b32 s{d+1}, s{b+1}\ns_mov_b32 s{d+2}, {n}\ns_mov_b32 s{d+3}, 0x20000")
    def lds_flag_wait(off, av=9, sleep=2):
        l, d = L("LW"), L("LD")
        a(f"""
        s_mov_b32 s60, {BOUND}
        {l}:
        ds_read_b32 v1, v{av} offset:{off}
        s_waitcnt lgkmcnt(0)
        v_readfirstlane_b32 s61, v1
        s_cmp_lg_u32 s61, 0
        s_cbranch_scc1 {d}
        s_sleep {sleep}
        s_sub_u32 s60, s60, 1
        s_cbranch_scc0 {l}
        {d}:
        """)
    def arrive(off, last, notlast_label):
        a(f"""
        s_waitcnt lgkmcnt(0)
        s_mov_b64 exec, 1
        v_mov_b32 v11, 1
        ds_add_rtn_u32 v10, v9, v11 offset:{off}
        s_waitcnt lgkmcnt(0)
        s_mov_b64 exec, -1
        v_readfirstlane_b32 s61, v10
        s_cmp_lg_u32 s61, {last}
        s_cbranch_scc1 {notlast_label}
        """)
    def signal(off):
        a(f"ds_write_b32 v6, v0 offset:{off}")
    M = 12
    def tile_compute(nblk, wreg, xreg, tab_v, tab_off, younger, acc0, acc1, A0, A1):
        for u in range(nblk):
            a(f"ds_read_b128 v[{xreg+4*u}:{xreg+4*u+3}], v{tab_v} offset:{tab_off + 64*u}")
        a("s_waitcnt lgkmcnt(0)")
        nl = 2 * nblk
        for n in range(nl):
            u, k = n // 2, n % 2
            for rho, A in ((0, A0), (1, A1)):
                for d in range(4):
                    a(f"v_and_b32 v{A+d}, v{xreg+4*u+2*k+rho}, v{M+d}")
            if younger is not None:
                a(f"s_waitcnt vmcnt({nl-1-n+younger})")
            else:
                a("s_nop 0")
            w = wreg + 4 * n
            c0 = "0" if n == 0 else f"v[{acc0}:{acc0+3}]"
            c1 = "0" if n == 0 else f"v[{acc1}:{acc1+3}]"
            a(f"v_mfma_f32_16x16x32_bf16 v[{acc0}:{acc0+3}], v[{A0}:{A0+3}], v[{w}:{w+3}], {c0}")
            a(f"v_mfma_f32_16x16x32_bf16 v[{acc1}:{acc1+3}], v[{A1}:{A1+3}], v[{w}:{w+3}], {c1}")
    def tile_reduce(acc0, acc1, T, slot_off, cnt_off, notlast):
        a("s_nop 7")
        for i in range(4):
            a(f"v_cndmask_b32 v{T+4+i}, v{acc1+i}, v{acc0+i}, s[52:53]")
        for i in range(4):
            a(f"v_add_f32_dpp v{T+i}, v{T+4+i}, v{T+4+i} row_ror:8 row_mask:0xf bank_mask:0xf")
        a(f"ds_write_b128 v8, v[{T}:{T+3}] offset:{slot_off}")
        arrive(cnt_off, 3, notlast)
        for w in range(4):
            a(f"ds_read_b128 v[{T+4+4*w}:{T+7+4*w}], v7 offset:{slot_off + 1024*w}")
        a("s_waitcnt lgkmcnt(0)")
        for i in range(4):
            a(f"v_add_f32 v{T+i}, v{T+4+i}, v{T+8+i}")
            a(f"v_add_f32 v{T+12+i}, v{T+12+i}, v{T+16+i}")
        for i in range(4):
            a(f"v_add_f32 v{T+i}, v{T+i}, v{T+12+i}")

    a(f"""
    s_cmp_ge_u32 s2, 256
    s_cbranch_scc1 L_end
    """)
    if stamps:
        for i in range(80, 100): a(f"s_mov_b32 s{i}, 0")
    STAMP(0)
    a(f"""
    s_load_dwordx16 s[4:19], s[0:1], 0
    s_load_dwordx8 s[20:27], s[0:1], 64
    v_lshrrev_b32 v1, 6, v0
    v_and_b32 v2, 63, v0                ; lane
    v_readfirstlane_b32 s3, v1
    v_lshrrev_b32 v3, 4, v2             ; g
    v_and_b32 v4, 15, v2                ; r
    v_and_b32 v5, 7, v2                 ; e'
    v_lshrrev_b32 v6, 1, v5
    v_and_b32 v7, 1, v5
    v_lshlrev_b32 v7, 4, v7
    v_mov_b32 v8, 0xffff
    v_lshlrev_b32 v8, v7, v8
    v_cmp_eq_u32 s[52:53], 0, v6
    v_cmp_eq_u32 s[54:55], 1, v6
    v_cmp_eq_u32 s[56:57], 2, v6
    v_cmp_eq_u32 s[58:59], 3, v6
    v_mov_b32 v9, 0
    v_cndmask_b32 v12, 0, v8, s[52:53]
    v_cndmask_b32 v13, 0, v8, s[54:55]
    v_cndmask_b32 v14, 0, v8, s[56:57]
    v_cndmask_b32 v15, 0, v8, s[58:59]
    v_lshlrev_b32 v7, 4, v2             ; lane*16
    v_cmp_gt_u32 s[52:53], 8, v4        ; r < 8
    s_and_b32 s62, s3, 3
    s_lshl_b32 s62, s62, 2
    v_mov_b32 v6, s62                   ; chain*4
    v_mov_b32 v0, 1
    s_lshr_b32 s62, s2, 3               ; pair
    s_and_b32 s63, s2, 7                ; split
    s_waitcnt lgkmcnt(0)
    """)
    srd(28, 26, 0x40000000)
    srd(44, 4, 2304)
    a("""
    s_cmp_ge_u32 s3, 4
    s_cbranch_scc1 L_attn
    """)
    a(f"""
    s_setprio 1
    s_lshl_b32 s64, s3, 10
    v_add_u32 v8, s64, v7               ; w*1024 + lane*16
    s_sub_u32 s65, 255, s2              ; t3
    """)
    a(f"""
    s_cmp_lg_u32 s3, 0
    s_cbranch_scc1 L_h_noclear
    v_mov_b32 v20, 0
    v_mov_b32 v21, 0
    v_mov_b32 v22, 0
    v_mov_b32 v23, 0
    ds_write_b128 v9, v[20:23] offset:{L_CNT}
    ds_write_b128 v9, v[20:23] offset:{L_CNT+16}
    ds_write_b128 v9, v[20:23] offset:{L_CNT+32}
    ds_write_b128 v9, v[20:23] offset:{L_CNT+48}
    ds_write_b128 v9, v[20:23] offset:{L_CNT+64}
    L_h_noclear:
    s_cmp_ge_u32 s2, 208
    s_cbranch_scc1 L_h_light
    v_lshrrev_b32 v20, 5, v2
    v_and_b32 v21, 31, v2
    v_mul_u32_u24 v22, 1152, v20
    v_mul_u32_u24 v23, 36, v21
    v_add_u32 v22, v22, v23
    buffer_load_dwordx4 v[140:143], v22, s[44:47], 0 offen
    buffer_load_dwordx4 v[144:147], v22, s[44:47], 0 offen offset:16
    buffer_load_dword v148, v22, s[44:47], 0 offen offset:32
    s_mov_b32 s36, s10
    s_mov_b32 s37, s11
    s_mov_b32 s38, {576*4096*2}
    s_mov_b32 s68, 8192
    s_mov_b32 s69, s2
    s_cmp_lt_u32 s2, 64
    s_cbranch_scc1 L_p1sel
    s_mov_b32 s36, s16
    s_mov_b32 s37, s17
    s_mov_b32 s38, {576*4608*2}
    s_mov_b32 s68, 9216
    s_sub_u32 s69, s2, 64
    s_cmp_lt_u32 s2, 136
    s_cbranch_scc1 L_p1sel
    s_mov_b32 s36, s18
    s_mov_b32 s37, s19
    s_sub_u32 s69, s2, 136
    L_p1sel:
    s_mov_b32 s39, 0x20000
    v_lshrrev_b32 v24, 3, v4            ; rho
    v_lshl_add_u32 v24, v3, 2, v24      ; 4g + rho
    v_mul_lo_u32 v25, v24, s68
    v_lshl_add_u32 v25, v5, 4, v25      ; + (r&7)*16      -> vA
    s_lshl_b32 s70, s68, 1
    v_add_u32 v26, s70, v25
    s_lshl_b32 s69, s69, 7
    s_mul_i32 s70, s3, 144
    s_mul_i32 s70, s70, s68
    s_add_u32 s69, s69, s70             ; soffset
    s_lshl_b32 s70, s68, 4              ; 16 rows
    """)
    W1 = 32
    def p1load(n):
        a(f"buffer_load_dwordx4 v[{W1+4*n}:{W1+4*n+3}], v{25 + (n & 1)}, s[36:39], s69 offen{NT}")
        if n & 1: a("s_add_u32 s69, s69, s70")
    for n in range(T):
        p1load(n)
    a("s_waitcnt lgkmcnt(0)\ns_barrier")
    main_a = a
    a_ln = Asm()
    a.lines, saved = [], a.lines
    X = 104
    for i in range(9):
        a(f"v_lshlrev_b32 v{X+2*i}, 16, v{140+i}")
        a(f"v_and_b32 v{X+2*i+1}, 0xffff0000, v{140+i}")
    def red32(v, t):
        for mode in ("quad_perm:[1,0,3,2]", "quad_perm:[2,3,0,1]", "row_half_mirror", "row_mirror"):
            a("s_nop 1")
            a(f"v_add_f32_dpp v{v}, v{v}, v{v} {mode} row_mask:0xf bank_mask:0xf")
        a(f"v_mov_b32 v{t}, v{v}")
        a("s_nop 1")
        a(f"v_permlane16_swap_b32 v{v}, v{t}")
        a("s_nop 1")
        a(f"v_add_f32 v{v}, v{v}, v{t}")
    a(f"v_add_f32 v122, v{X}, v{X+1}")
    for i in range(2, 18):
        a(f"v_add_f32 v122, v122, v{X+i}")
    red32(122, 123)
    import struct
    f2u = lambda f: struct.unpack("<I", struct.pack("<f", f))[0]
    a(f"v_mul_f32 v122, {hex(f2u(1.0/576))}, v122       ; mean (f32)")
    a(f"v_sub_f32 v124, v{X}, v122")
    a(f"v_mul_f32 v125, v124, v124")
    for i in range(1, 18):
        a(f"v_sub_f32 v124, v{X+i}, v122")
        a(f"v_fmac_f32 v125, v124, v124")
    red32(125, 123)
    a(f"""
    v_mul_f32 v125, {hex(f2u(1.0/576))}, v125       ; var (f32)
    v_cvt_pk_bf16_f32 v122, v122, v125
    v_and_b32 v125, 0xffff0000, v122
    v_lshlrev_b32 v122, 16, v122
    v_add_f32 v125, {hex(f2u(1e-5))}, v125
    v_cvt_pk_bf16_f32 v125, v125, v125
    v_and_b32 v125, 0xffff0000, v125
    v_sqrt_f32 v125, v125
    s_nop 0
    v_cvt_pk_bf16_f32 v125, v125, v125
    v_and_b32 v125, 0xffff0000, v125
    v_rcp_f32 v125, v125
    """)
    for i in range(18):
        a(f"v_sub_f32 v{X+i}, v{X+i}, v122")
    for i in range(9):
        a(f"v_cvt_pk_bf16_f32 v{140+i}, v{X+2*i}, v{X+2*i+1}")
    for i in range(9):
        a(f"v_lshlrev_b32 v{X+2*i}, 16, v{140+i}")
        a(f"v_and_b32 v{X+2*i+1}, 0xffff0000, v{140+i}")
    for i in range(18):
        a(f"v_mul_f32 v{X+i}, v{X+i}, v125")
    for i in range(18):
        a(f"v_cvt_pk_bf16_f32 v{X+i}, v{X+i}, v{X+i}")
    a(f"""
    v_mul_u32_u24 v22, {XNS}, v20
    v_mul_u32_u24 v23, 72, v21
    v_add_u32 v22, v22, v23
    """)
    for i in range(9):
        a(f"ds_write_b64 v22, v[{X+2*i}:{X+2*i+1}] offset:{L_XN + 8*i}")
    ln_lines = a.lines
    a.lines = saved
    a(f"s_waitcnt vmcnt({T})")
    rem = list(range(T, 18))
    step = len(ln_lines) // (len(rem) + 1)
    k = 0
    for idx, line in enumerate(ln_lines):
        a.lines.append(line)
        if rem and idx >= step * (k + 1) - 1 and "s_nop" not in line and "v_mov_b32 v123" not in line:
            a(f"s_waitcnt vmcnt({T-1})")
            p1load(rem.pop(0)); k += 1
    assert not rem
    STAMP(1)
    a(f"""
    v_lshrrev_b32 v27, 3, v4            ; b = r>>3
    v_mul_u32_u24 v28, {XNS}, v27
    v_lshl_add_u32 v28, v3, 4, v28
    s_mul_i32 s71, s3, {144*4}
    v_add_u32 v28, s71, v28
    s_waitcnt vmcnt({sigH})
    """)
    signal(L_CNT + 32)
    a("s_waitcnt lgkmcnt(0)")
    tile_compute(9, W1, 104, 28, L_XN, 0, 16, 20, 140, 144)
    STAMP(2)
    tile_reduce(16, 20, 104, L_S1, 4, "L_h_p1done")
    lds_flag_wait(L_CNT + 16)
    a(f"""
    v_cvt_pk_bf16_f32 v104, v104, v105
    v_cvt_pk_bf16_f32 v105, v106, v107
    v_lshrrev_b32 v20, 1, v3            ; b = g>>1
    v_and_b32 v21, 1, v3
    v_lshlrev_b32 v22, 15, v20
    v_lshl_add_u32 v22, v4, 4, v22      ; + r*16
    v_lshl_add_u32 v22, v21, 3, v22     ; + (g&1)*8
    s_lshl_b32 s70, s2, 7
    s_add_u32 s70, s70, {ZB}
    v_min_u32 v104, -2, v104
    v_min_u32 v105, -2, v105
    s_mov_b64 exec, s[52:53]
    buffer_store_dwordx2 v[104:105], v22, s[28:31], s70 offen sc1
    s_mov_b64 exec, -1
    s_branch L_h_p1done
    L_h_light:
    s_waitcnt lgkmcnt(0)
    s_barrier
    ds_write_b32 v6, v0 offset:{L_CNT+32}
    L_h_p1done:
    """)
    STAMP(3)
    a(f"""
    s_cmp_lg_u32 s3, 0
    s_cbranch_scc1 L_h_waitflag
    """)
    lds_flag_wait(L_CNT + 16)
    a(f"""
    s_lshl_b32 s66, s2, 11
    s_add_u32 s66, s66, {OB}
    s_mov_b32 s60, {BOUND}
    L_poll_go:
    buffer_load_dword v21, v9, s[28:31], s66 offen offset:1152 sc1
    s_waitcnt vmcnt(0)
    v_cmp_ne_u32 vcc, 1, v21
    s_cbranch_vccz L_go_ok
    s_sleep 4
    s_sub_u32 s60, s60, 1
    s_cbranch_scc0 L_poll_go
    L_go_ok:
    s_lshr_b32 s70, s62, 4              ; b
    s_lshl_b32 s70, s70, 15
    s_and_b32 s71, s62, 15              ; hkv
    s_lshl_b32 s71, s71, 9
    s_add_u32 s70, s70, s71
    s_add_u32 s70, s70, {ZB}
    v_and_b32 v20, 0x1f0, v7            ; (lane&31)*16
    s_mov_b32 s60, {BOUND}
    L_poll_q:
    buffer_load_dwordx4 v[24:27], v20, s[28:31], s70 offen sc1
    s_waitcnt vmcnt(0)
    v_max3_u32 v21, v24, v25, v26
    v_max_u32 v21, v21, v27
    v_cmp_eq_u32 vcc, -1, v21
    s_cbranch_vccz L_q_ok
    s_sleep 4
    s_sub_u32 s60, s60, 1
    s_cbranch_scc0 L_poll_q
    L_q_ok:
    ds_write_b128 v20, v[24:27] offset:{L_Q}
    v_mov_b32 v21, 1
    s_waitcnt lgkmcnt(0)
    ds_write_b32 v9, v21 offset:{L_CNT+12}
    s_branch L_h_p3
    L_h_waitflag:
    """)
    lds_flag_wait(L_CNT + 12)
    a("L_h_p3:")
    STAMP(4)
    a(f"""
    s_cmp_ge_u32 s65, 252
    s_cbranch_scc1 L_fin
    v_lshrrev_b32 v24, 3, v4            ; rho / b
    v_lshl_add_u32 v25, v3, 2, v24      ; 4g + rho
    v_mul_u32_u24 v25, 1152, v25
    v_lshl_add_u32 v25, v5, 4, v25      ; vA
    v_mul_u32_u24 v28, {P3S}, v24
    v_lshl_add_u32 v28, v3, 4, v28
    s_cmp_ge_u32 s65, 108
    s_cbranch_scc1 L_h_wo
    ; =========== D tile ===========
    s_mul_i32 s66, s65, 171
    s_lshr_b32 s66, s66, 11             ; c
    s_mul_i32 s67, s66, 12
    s_sub_u32 s67, s65, s67             ; j'
    s_mul_i32 s67, s67, 384
    s_mul_i32 s68, s3, 96
    s_add_u32 s67, s67, s68             ; R0
    s_lshl_b32 s68, s68, 2
    v_add_u32 v28, s68, v28
    v_lshrrev_b32 v20, 5, v2
    v_and_b32 v21, 31, v2
    v_min_u32 v21, 23, v21
    v_lshlrev_b32 v22, 15, v20
    v_lshl_add_u32 v22, v21, 3, v22
    s_lshl_b32 s69, s67, 1
    s_add_u32 s69, s69, {ZB + 4096*2}
    s_add_u32 s70, s69, {4608*2}
    """)
    srd(40, 20, 576*4608*2)
    a(f"""
    s_mul_i32 s67, s67, 1152
    s_lshl_b32 s66, s66, 7
    s_add_u32 s67, s67, s66
    v_mul_u32_u24 v23, {P3S}, v20
    v_lshl_add_u32 v23, v21, 4, v23
    v_add_u32 v23, s68, v23
    s_mov_b32 s60, {BOUND}
    L_poll_h:
    buffer_load_dwordx2 v[32:33], v22, s[28:31], s69 offen sc1
    buffer_load_dwordx2 v[34:35], v22, s[28:31], s70 offen sc1
    s_waitcnt vmcnt(0)
    v_max3_u32 v36, v32, v33, v34
    v_max_u32 v36, v36, v35
    v_cmp_eq_u32 vcc, -1, v36
    s_cbranch_vccz L_h_ok
    s_sleep 4
    s_sub_u32 s60, s60, 1
    s_cbranch_scc0 L_poll_h
    L_h_ok:
    v_lshlrev_b32 v36, 16, v32
    v_and_b32 v37, 0xffff0000, v32
    v_lshlrev_b32 v38, 16, v33
    v_and_b32 v39, 0xffff0000, v33
    v_lshlrev_b32 v40, 16, v34
    v_and_b32 v41, 0xffff0000, v34
    v_lshlrev_b32 v42, 16, v35
    v_and_b32 v43, 0xffff0000, v35
    v_cmp_lt_f32 s[56:57], 0, v36
    v_cmp_lt_f32 s[58:59], 0, v37
    v_cmp_lt_f32 s[72:73], 0, v38
    v_cmp_lt_f32 s[74:75], 0, v39
    s_nop 0
    v_cndmask_b32 v44, 0, 1.0, s[56:57]
    v_cndmask_b32 v45, 0, 1.0, s[58:59]
    v_cndmask_b32 v46, 0, 1.0, s[72:73]
    v_cndmask_b32 v47, 0, 1.0, s[74:75]
    """)
    for i in range(4):
        a(f"v_mul_f32 v{36+i}, v{36+i}, v{44+i}")
    for i in range(4):
        a(f"v_mul_f32 v{36+i}, v{36+i}, v{40+i}")
    for i in range(4):
        a(f"v_cvt_pk_bf16_f32 v{36+i}, v{36+i}, v{36+i}")
    a(f"""
    ds_write_b128 v23, v[36:39] offset:{L_P3}
    """)
    lds_flag_wait(L_CNT + 64, 6, 1)
    W3 = 104
    for n in range(12):
        if n >= T3: a(f"s_waitcnt vmcnt({T3-1})")
        a(f"buffer_load_dwordx4 v[{W3+4*n}:{W3+4*n+3}], v25, s[40:43], s67 offen offset:{2304*(n&1)}{NT}")
        if n & 1: a("s_add_u32 s67, s67, 18432")
    STAMP(5)
    a("s_waitcnt lgkmcnt(0)")
    tile_compute(6, W3, 48, 28, L_P3, 0, 16, 20, 32, 36)
    a("s_branch L_h_p3fin")
    a(f"""
    L_h_wo:
    s_sub_u32 s66, s65, 108
    s_and_b32 s67, s66, 15              ; j (hkv)
    s_lshr_b32 s66, s66, 4              ; c
    s_lshl_b32 s68, s3, 8               ; w*64*4
    v_add_u32 v28, s68, v28
    """)
    srd(40, 12, 576*4096*2)
    a(f"""
    s_lshl_b32 s69, s67, 8
    s_lshl_b32 s70, s3, 6
    s_add_u32 s69, s69, s70             ; R0
    s_mul_i32 s69, s69, 1152
    s_lshl_b32 s66, s66, 7
    s_add_u32 s69, s69, s66
    """)
    lds_flag_wait(L_CNT + 64, 6, 1)
    for n in range(8):
        if n >= T3: a(f"s_waitcnt vmcnt({T3-1})")
        a(f"buffer_load_dwordx4 v[{W3+4*n}:{W3+4*n+3}], v25, s[40:43], s69 offen offset:{2304*(n&1)}{NT}")
        if n & 1: a("s_add_u32 s69, s69, 18432")
    STAMP(5)
    a(f"""
    v_lshlrev_b32 v20, 11, v3           ; g*2048
    v_lshl_add_u32 v20, v4, 4, v20      ; + r*16
    s_lshl_b32 s70, s67, 14             ; j*8*2048
    s_add_u32 s70, s70, {OB}
    s_add_u32 s71, s70, s68             ; + w*256   (m=0)
    s_add_u32 s72, s71, {4*2048}        ; m=1
    s_add_u32 s73, s71, {128*2048}      ; m=2
    s_add_u32 s74, s73, {4*2048}        ; m=3
    v_add_u32 v21, v4, v3
    v_and_b32 v21, 3, v21
    v_and_b32 v22, 4, v4
    v_or_b32 v21, v21, v22              ; split
    v_lshlrev_b32 v21, 11, v21
    v_lshl_add_u32 v21, v24, 18, v21    ; + b*128*2048
    s_lshr_b32 s75, s3, 1               ; head
    s_lshl_b32 s75, s75, 3
    s_add_u32 s75, s75, s70
    v_lshrrev_b32 v22, 1, v3
    v_mul_u32_u24 v22, {P3S}, v22
    v_lshl_add_u32 v22, v4, 4, v22
    v_and_b32 v23, 1, v3
    v_lshl_add_u32 v22, v23, 3, v22
    v_add_u32 v22, s68, v22
    s_mov_b32 s60, {BOUND}
    L_poll_o:
    buffer_load_dwordx2 v[48:49], v21, s[28:31], s75 offen offset:1024 sc1
    buffer_load_dwordx4 v[32:35], v20, s[28:31], s71 offen sc1
    buffer_load_dwordx4 v[36:39], v20, s[28:31], s72 offen sc1
    buffer_load_dwordx4 v[40:43], v20, s[28:31], s73 offen sc1
    buffer_load_dwordx4 v[44:47], v20, s[28:31], s74 offen sc1
    s_waitcnt vmcnt(0)
    v_max3_u32 v50, v32, v33, v34
    v_max3_u32 v51, v35, v36, v37
    v_max3_u32 v52, v38, v39, v40
    v_max3_u32 v53, v41, v42, v43
    v_max3_u32 v54, v44, v45, v46
    v_max3_u32 v55, v47, v48, v49
    v_max3_u32 v50, v50, v51, v52
    v_max3_u32 v53, v53, v54, v55
    v_max_u32 v50, v50, v53
    v_cmp_eq_u32 vcc, -1, v50
    s_cbranch_vccz L_o_ok
    s_sleep 4
    s_sub_u32 s60, s60, 1
    s_cbranch_scc0 L_poll_o
    L_o_ok:
    """)
    STAMP(6)
    a(f"""
    v_max_f32_dpp v50, v48, v48 quad_perm:[1,0,3,2] row_mask:0xf bank_mask:0xf
    s_nop 1
    v_max_f32_dpp v50, v50, v50 quad_perm:[2,3,0,1] row_mask:0xf bank_mask:0xf
    s_nop 1
    v_max_f32_dpp v50, v50, v50 row_half_mirror row_mask:0xf bank_mask:0xf
    v_sub_f32 v50, v48, v50
    v_exp_f32 v50, v50                  ; e
    s_nop 0
    v_mul_f32 v51, v50, v49             ; e*l
    s_nop 1
    v_add_f32_dpp v51, v51, v51 quad_perm:[1,0,3,2] row_mask:0xf bank_mask:0xf
    s_nop 1
    v_add_f32_dpp v51, v51, v51 quad_perm:[2,3,0,1] row_mask:0xf bank_mask:0xf
    s_nop 1
    v_add_f32_dpp v51, v51, v51 row_half_mirror row_mask:0xf bank_mask:0xf
    v_rcp_f32 v51, v51
    s_nop 0
    v_mul_f32 v50, v50, v51             ; w
    s_nop 1
    """)
    for i in range(4):
        a(f"v_mul_f32_dpp v{52+i}, v50, v{32+i} row_newbcast:0 row_mask:0xf bank_mask:0xf")
    for i in range(4):
        a(f"v_mul_f32_dpp v{56+i}, v50, v{40+i} row_newbcast:8 row_mask:0xf bank_mask:0xf")
    for i in range(4):
        a(f"v_fmac_f32_dpp v{52+i}, v50, v{36+i} row_newbcast:4 row_mask:0xf bank_mask:0xf")
    for i in range(4):
        a(f"v_fmac_f32_dpp v{56+i}, v50, v{44+i} row_newbcast:12 row_mask:0xf bank_mask:0xf")
    a("s_nop 1")
    for i in range(4):
        a(f"v_permlane32_swap_b32 v{52+i}, v{56+i}")
    a("s_nop 0")
    for i in range(4):
        a(f"v_add_f32 v{52+i}, v{52+i}, v{56+i}")
    a(f"""
    s_nop 1
    v_permlane16_swap_b32 v52, v54
    v_permlane16_swap_b32 v53, v55
    s_nop 0
    v_add_f32 v52, v52, v54
    v_add_f32 v53, v53, v55
    v_cvt_pk_bf16_f32 v52, v52, v52
    v_cvt_pk_bf16_f32 v53, v53, v53
    ds_write_b64 v22, v[52:53] offset:{L_P3}
    s_waitcnt lgkmcnt(0)
    """)
    tile_compute(4, W3, 48, 28, L_P3, None, 16, 20, 32, 36)
    a("L_h_p3fin:")
    STAMP(7)
    tile_reduce(16, 20, 64, L_S3, 8, "L_fin")
    a(f"""
    v_lshrrev_b32 v20, 1, v3            ; b
    v_and_b32 v21, 1, v3
    v_lshlrev_b32 v22, 8, v20
    v_lshl_add_u32 v22, v4, 5, v22      ; + r*32
    v_lshl_add_u32 v22, v21, 4, v22     ; + (g&1)*16
    s_lshl_b32 s70, s65, 9
    s_add_u32 s70, s70, {PB}
    v_min_u32 v64, -2, v64
    v_min_u32 v65, -2, v65
    v_min_u32 v66, -2, v66
    v_min_u32 v67, -2, v67
    s_mov_b64 exec, s[52:53]
    buffer_store_dwordx4 v[64:67], v22, s[28:31], s70 offen sc1
    s_mov_b64 exec, -1
    """)
    STAMP(8)
    a("s_branch L_fin")
    Q, K, V, E = 16, 32, 96, 160
    a(f"""
    L_attn:
    s_sub_u32 s64, s3, 4                ; a
    s_lshr_b32 s76, s64, 2
    s_lshl_b32 s76, s76, 4
    v_add_u32 v6, s76, v6
    """)
    srd(36, 6, 0x10000000)
    srd(40, 8, 0x10000000)
    a(f"""
    s_lshl_b32 s65, s62, 23
    s_lshl_b32 s66, s63, 17
    s_add_u32 s65, s65, s66
    s_add_u32 s65, s65, {28672*256}
    v_lshlrev_b32 v10, 8, v4
    v_lshl_add_u32 v10, v3, 4, v10      ; K: r*256 + g*16
    v_lshlrev_b32 v11, 10, v3
    v_lshl_add_u32 v11, v4, 4, v11      ; V: g*1024 + r*16
    s_mul_i32 s66, s2, {rotmul}
    """)
    if order == "inter":
        a("s_add_u32 s66, s66, s64"); tstep = 8
    else:
        a("s_and_b32 s67, s64, 3\ns_add_u32 s66, s66, s67\ns_lshr_b32 s67, s64, 2\ns_lshl_b32 s67, s67, 4\ns_add_u32 s66, s66, s67"); tstep = 4
    for t in range(4):
        a(f"s_add_u32 s67, s66, {t*tstep}\ns_and_b32 s67, s67, 31\ns_lshl_b32 s67, s67, 12\ns_add_u32 s{68+t}, s67, s65")
    a(f"""
    s_cmp_lg_u32 s64, 4
    s_cbranch_scc1 L_attn_bar
    v_mov_b32 v16, -1
    v_mov_b32 v17, -1
    v_mov_b32 v18, -1
    v_mov_b32 v19, -1
    s_lshl_b32 s72, s2, 11
    s_add_u32 s72, s72, {OB}
    v_lshlrev_b32 v24, 3, v2
    v_lshlrev_b32 v25, 2, v2
    s_sub_u32 s73, 255, s2
    s_lshl_b32 s73, s73, 9
    s_add_u32 s73, s73, {PB}
    v_lshrrev_b32 v26, 5, v2
    v_lshlrev_b32 v26, 15, v26
    v_and_b32 v27, 0x7c, v25
    v_add_u32 v26, v26, v27
    s_lshl_b32 s74, s2, 7
    s_add_u32 s74, s74, {ZB}
    buffer_store_dword v16, v26, s[28:31], s74 offen sc1
    buffer_store_dword v16, v25, s[28:31], s72 offen offset:1024 sc1
    buffer_store_dwordx4 v[16:19], v7, s[28:31], s72 offen sc1
    buffer_store_dwordx2 v[16:17], v24, s[28:31], s73 offen sc1
    s_barrier
    v_mov_b32 v20, 1
    s_waitcnt vmcnt(0)
    ds_write_b32 v9, v20 offset:{L_CNT+16}
    """)
    if satomic:
        a(f"""
        s_mov_b32 s75, 1
        s_atomic_add s75, s[24:25], 0 glc
        s_waitcnt lgkmcnt(0)
        """)
    else:
        srd(32, 24, 256)
        a(f"""
        s_mov_b64 exec, 1
        v_mov_b32 v21, 1
        buffer_atomic_add v21, v9, s[32:35], 0 offen sc0
        s_waitcnt vmcnt(0)
        s_mov_b64 exec, -1
        v_readfirstlane_b32 s75, v21
        """)
    STAMP(7)
    a(f"""
    s_cmp_lg_u32 s75, 255
    s_cbranch_scc1 L_attn_notlast
    v_lshlrev_b32 v24, 11, v2
    s_mov_b32 s72, {OB}
    s_mov_b32 s73, {OB + 64*2048}
    s_mov_b32 s74, {OB + 128*2048}
    s_mov_b32 s75, {OB + 192*2048}
    buffer_store_dword v20, v24, s[28:31], s72 offen offset:1152 sc1
    buffer_store_dword v20, v24, s[28:31], s73 offen offset:1152 sc1
    buffer_store_dword v20, v24, s[28:31], s74 offen offset:1152 sc1
    buffer_store_dword v20, v24, s[28:31], s75 offen offset:1152 sc1
    L_attn_notlast:
    s_branch L_attn_go
    L_attn_bar:
    s_barrier
    L_attn_go:
    """)
    lds_flag_wait(L_CNT + 32, 6, 1)
    a("s_setprio 2")
    STAMP(1)
    cnt = 0
    for t in range(4):
        for j in range(4):
            r = K + 16*t + 4*j
            if cnt >= T: a(f"s_waitcnt vmcnt({T-1})")
            a(f"buffer_load_dwordx4 v[{r}:{r+3}], v10, s[36:39], s{68+t} offen offset:{64*j}{NT}")
            cnt += 1
    for t in range(4):
        for i in range(4):
            r = V + 16*t + 4*i
            if cnt >= T: a(f"s_waitcnt vmcnt({T-1})")
            a(f"buffer_load_dwordx4 v[{r}:{r+3}], v11, s[40:43], s{68+t} offen offset:{256*i}{NT}")
            cnt += 1
    STAMP(2)
    a(f"""
    s_cmp_ge_u32 s64, 4
    s_cbranch_scc1 L_attn_nosig
    s_waitcnt vmcnt({sigA})
    """)
    signal(L_CNT + 48)
    a("s_setprio 0\nL_attn_nosig:")
    lds_flag_wait(L_CNT + 12)
    STAMP(3)
    a(f"""
    v_lshrrev_b32 v10, 3, v4
    v_lshlrev_b32 v10, 8, v10
    v_lshl_add_u32 v10, v3, 4, v10      ; h*256 + g*16
    """)
    for j in range(4):
        a(f"ds_read_b128 v[{Q+4*j}:{Q+4*j+3}], v10 offset:{L_Q + 64*j}")
    a("s_waitcnt vmcnt(16) lgkmcnt(0)")
    S = [E, E+4, K, K+4]
    for t in range(4):
        for j in range(4):
            r = K + 16*t + 4*j
            c = "0" if j == 0 else f"v[{S[t]}:{S[t]+3}]"
            a(f"v_mfma_f32_16x16x32_bf16 v[{S[t]}:{S[t]+3}], v[{r}:{r+3}], v[{Q+4*j}:{Q+4*j+3}], {c}")
    a(f"s_mov_b32 s72, {hex(SCALE)}\ns_mov_b32 s73, {hex(LOG2E)}")
    a("s_nop 5")
    for t in range(4):
        for p in range(2):
            s0, s1 = S[t] + 2*p, S[t] + 2*p + 1
            d0, d1 = Q + 4*t + 2*p, Q + 4*t + 2*p + 1
            a(f"""
            v_cvt_pk_bf16_f32 v{s0}, v{s0}, v{s1}
            v_and_b32 v{s1}, 0xffff0000, v{s0}
            v_lshlrev_b32 v{s0}, 16, v{s0}
            v_mul_f32 v{s0}, s72, v{s0}
            v_mul_f32 v{s1}, s72, v{s1}
            v_cvt_pk_bf16_f32 v{s0}, v{s0}, v{s1}
            v_and_b32 v{d1}, 0xffff0000, v{s0}
            v_lshlrev_b32 v{d0}, 16, v{s0}
            """)
    signal(L_CNT + 48)
    a(f"v_max3_f32 v10, v{Q}, v{Q+1}, v{Q+2}")
    for i in range(3, 15, 2):
        a(f"v_max3_f32 v10, v10, v{Q+i}, v{Q+i+1}")
    a(f"""
    v_max_f32 v10, v10, v{Q+15}
    v_mov_b32 v11, v10
    s_nop 1
    v_permlane16_swap_b32 v10, v11
    s_nop 0
    v_max_f32 v10, v10, v11
    v_mov_b32 v11, v10
    s_nop 1
    v_permlane32_swap_b32 v10, v11
    s_nop 0
    v_max_f32 v10, v10, v11
    v_mul_f32 v{E+4}, s73, v10            ; m' = m*log2e
    """)
    for i in range(16):
        a(f"v_fma_f32 v{Q+i}, v{Q+i}, s73, -v{E+4}")
    for i in range(16):
        a(f"v_exp_f32 v{Q+i}, v{Q+i}")
    a(f"v_add_f32 v{E+5}, v{Q}, v{Q+1}")
    for i in range(2, 16):
        a(f"v_add_f32 v{E+5}, v{E+5}, v{Q+i}")
    for i in range(16):
        a(f"v_cvt_pk_bf16_f32 v{Q+i}, v{Q+i}, v{Q+i}")
    for n in range(16):
        for d in range(4):
            a(f"v_and_b32 v{K+4*n+d}, v{Q+n}, v{M+d}")
    a(f"""
    v_mov_b32 v11, v{E+5}
    s_nop 1
    v_permlane16_swap_b32 v{E+5}, v11
    s_nop 0
    v_add_f32 v{E+5}, v{E+5}, v11
    v_mov_b32 v11, v{E+5}
    s_nop 1
    v_permlane32_swap_b32 v{E+5}, v11
    s_nop 0
    v_add_f32 v{E+5}, v{E+5}, v11
    v_lshlrev_b32 v10, 3, v2
    s_lshl_b32 s66, s64, 3
    v_add_u32 v10, s66, v10
    s_mov_b64 exec, 0x101
    ds_write_b64 v10, v[{E+4}:{E+5}] offset:{L_ML}
    s_mov_b64 exec, -1
    s_lshl_b32 s66, s64, 10
    v_add_u32 v8, s66, v7
    """)
    STAMP(4)
    for n in range(16):
        a(f"s_waitcnt vmcnt({15-n})")
        c = "0" if n == 0 else f"v[{E}:{E+3}]"
        a(f"v_mfma_f32_16x16x32_bf16 v[{E}:{E+3}], v[{K+4*n}:{K+4*n+3}], v[{V+4*n}:{V+4*n+3}], {c}")
    STAMP(5)
    a("s_nop 7")
    a(f"ds_write_b128 v8, v[{E}:{E+3}] offset:{L_SA}")
    arrive(L_CNT + 0, 7, "L_fin")
    a(f"""
    v_lshrrev_b32 v10, 1, v3
    v_lshlrev_b32 v10, 6, v10           ; h*64
    """)
    for i in range(4):
        a(f"ds_read_b128 v[{Q+4*i}:{Q+4*i+3}], v10 offset:{L_ML + 16*i}")
    for s in range(8):
        a(f"ds_read_b128 v[{K+4*s}:{K+4*s+3}], v7 offset:{L_SA + 1024*s}")
    a(f"""
    s_lshl_b32 s66, s2, 11
    s_add_u32 s66, s66, {OB}
    v_lshrrev_b32 v10, 1, v3            ; h
    v_lshlrev_b32 v11, 9, v10
    v_lshl_add_u32 v11, v4, 5, v11
    v_and_b32 v8, 1, v3
    v_lshl_add_u32 v11, v8, 4, v11      ; h*512 + r*32 + (g&1)*16
    v_lshlrev_b32 v10, 3, v10           ; h*8
    s_waitcnt lgkmcnt(0)
    v_max3_f32 v{E+4}, v{Q}, v{Q+2}, v{Q+4}
    v_max3_f32 v{E+5}, v{Q+6}, v{Q+8}, v{Q+10}
    v_max3_f32 v{E+4}, v{E+4}, v{Q+12}, v{Q+14}
    v_max_f32 v{E+4}, v{E+4}, v{E+5}
    """)
    for s in range(8):
        a(f"v_sub_f32 v{Q+2*s}, v{Q+2*s}, v{E+4}")
    for s in range(8):
        a(f"v_exp_f32 v{Q+2*s}, v{Q+2*s}")
    for i in range(4):
        a(f"v_mul_f32 v{E+i}, v{Q}, v{K+i}")
    a(f"v_mul_f32 v{E+5}, v{Q}, v{Q+1}")
    for s in range(1, 8):
        for i in range(4):
            a(f"v_fmac_f32 v{E+i}, v{Q+2*s}, v{K+4*s+i}")
        a(f"v_fmac_f32 v{E+5}, v{Q+2*s}, v{Q+2*s+1}")
    for i in range(6):
        a(f"v_min_u32 v{E+i}, -2, v{E+i}")
    a(f"""
    buffer_store_dwordx4 v[{E}:{E+3}], v11, s[28:31], s66 offen sc1
    s_mov_b32 exec_lo, 1
    s_mov_b32 exec_hi, 1
    buffer_store_dwordx2 v[{E+4}:{E+5}], v10, s[28:31], s66 offen offset:1024 sc1
    s_mov_b64 exec, -1
    """)
    STAMP(6)
    a(f"""
    s_cmp_ge_u32 s62, 9
    s_cbranch_scc1 L_fin
    s_cmp_ge_u32 s63, 2
    s_cbranch_scc1 L_fin
    """)
    srd(48, 22, 2304)
    a(f"""
    v_lshlrev_b32 v10, 9, v3
    v_lshl_add_u32 v10, v4, 4, v10      ; g*512 + r*16
    s_lshl_b32 s66, s63, 8
    s_add_u32 s66, s66, {PB}
    s_mul_i32 s67, s62, {12*512}
    s_add_u32 s67, s67, s66             ; D base
    s_lshl_b32 s68, s62, 13
    s_add_u32 s68, s68, s66
    s_add_u32 s68, s68, {108*512}       ; S base
    s_add_u32 s69, s68, 4096
    s_add_u32 s70, s67, 4096
    v_lshl_add_u32 v11, v4, 2, v3
    v_lshlrev_b32 v11, 1, v11
    s_mul_i32 s71, s63, 1152
    s_lshl_b32 s72, s62, 7
    s_add_u32 s71, s71, s72
    buffer_load_ushort v{Q}, v11, s[44:47], s71 offen
    s_mov_b32 s60, {BOUND}
    L_poll_f:
    buffer_load_dwordx4 v[{K}:{K+3}], v10, s[28:31], s67 offen sc1
    buffer_load_dwordx4 v[{K+4}:{K+7}], v10, s[28:31], s67 offen offset:2048 sc1
    buffer_load_dwordx4 v[{K+8}:{K+11}], v10, s[28:31], s70 offen sc1
    buffer_load_dwordx4 v[{K+12}:{K+15}], v10, s[28:31], s68 offen sc1
    buffer_load_dwordx4 v[{K+16}:{K+19}], v10, s[28:31], s68 offen offset:2048 sc1
    buffer_load_dwordx4 v[{K+20}:{K+23}], v10, s[28:31], s69 offen sc1
    buffer_load_dwordx4 v[{K+24}:{K+27}], v10, s[28:31], s69 offen offset:2048 sc1
    s_waitcnt vmcnt(0)
    """)
    for i in range(9):
        a(f"v_max3_u32 v{V+i}, v{K+3*i}, v{K+3*i+1}, v{K+3*i+2}")
    a(f"""
    v_max3_u32 v{V}, v{V}, v{V+1}, v{V+2}
    v_max3_u32 v{V+3}, v{V+3}, v{V+4}, v{V+5}
    v_max3_u32 v{V+6}, v{V+6}, v{V+7}, v{V+8}
    v_max3_u32 v{V}, v{V}, v{V+3}, v{V+6}
    v_max_u32 v{V}, v{V}, v{K+27}
    v_cmp_eq_u32 vcc, -1, v{V}
    s_cbranch_vccz L_f_ok
    s_sleep 2
    s_sub_u32 s60, s60, 1
    s_cbranch_scc0 L_poll_f
    L_f_ok:
    """)
    STAMP(7)
    for i in range(4):
        a(f"v_add_f32 v{K+i}, v{K+i}, v{K+4+i}")
        a(f"v_add_f32 v{K+12+i}, v{K+12+i}, v{K+16+i}")
        a(f"v_add_f32 v{K+20+i}, v{K+20+i}, v{K+24+i}")
    for i in range(4):
        a(f"v_add_f32 v{K+i}, v{K+i}, v{K+8+i}")
        a(f"v_add_f32 v{K+12+i}, v{K+12+i}, v{K+20+i}")
    Dn, Sn = K, K + 12
    a(f"""
    s_nop 1
    v_permlane32_swap_b32 v{Dn}, v{Dn+2}
    v_permlane32_swap_b32 v{Dn+1}, v{Dn+3}
    v_permlane32_swap_b32 v{Sn}, v{Sn+2}
    v_permlane32_swap_b32 v{Sn+1}, v{Sn+3}
    s_nop 0
    v_add_f32 v{Dn}, v{Dn}, v{Dn+2}
    v_add_f32 v{Dn+1}, v{Dn+1}, v{Dn+3}
    v_add_f32 v{Sn}, v{Sn}, v{Sn+2}
    v_add_f32 v{Sn+1}, v{Sn+1}, v{Sn+3}
    s_nop 1
    v_permlane16_swap_b32 v{Dn}, v{Dn+1}
    v_permlane16_swap_b32 v{Sn}, v{Sn+1}
    s_nop 0
    v_add_f32 v{Dn}, v{Dn}, v{Dn+1}
    v_add_f32 v{Sn}, v{Sn}, v{Sn+1}
    v_cvt_pk_bf16_f32 v{Dn}, v{Dn}, v{Sn}
    v_and_b32 v{Sn}, 0xffff0000, v{Dn}     ; s bf16
    v_lshlrev_b32 v{Dn}, 16, v{Dn}         ; d bf16
    v_mul_f32 v{Dn+1}, {hex(LOG2E | 0x80000000)}, v{Dn}
    v_exp_f32 v{Dn+1}, v{Dn+1}
    s_nop 0
    v_add_f32 v{Dn+1}, 1.0, v{Dn+1}
    v_rcp_f32 v{Dn+1}, v{Dn+1}
    s_nop 0
    v_mul_f32 v{Dn}, v{Dn}, v{Dn+1}        ; silu
    v_cvt_pk_bf16_f32 v{Dn}, v{Dn}, v{Dn}
    v_and_b32 v{Dn}, 0xffff0000, v{Dn}
    v_mul_f32 v{Dn}, v{Dn}, v{Sn}
    v_cvt_pk_bf16_f32 v{Dn}, v{Dn}, v{Dn}
    v_and_b32 v{Dn}, 0xffff0000, v{Dn}
    v_lshlrev_b32 v{Q}, 16, v{Q}
    v_add_f32 v{Dn}, v{Dn}, v{Q}
    v_cvt_pk_bf16_f32 v{Dn}, v{Dn}, v{Dn}
    buffer_store_short v{Dn}, v11, s[48:51], s71 offen
    """)
    STAMP(8)
    a("L_fin:")
    if stamps:
        a("s_waitcnt vmcnt(0)")
        STAMP(9)
        a(f"""
        s_waitcnt lgkmcnt(0)
        s_mul_i32 s60, s2, 12
        s_add_u32 s60, s60, s3
        s_mul_i32 s60, s60, 80
        s_add_u32 s60, s60, {STAMP_OFF}
        s_mov_b64 exec, 1
        """)
        for i in range(5):
            for k in range(4):
                a(f"v_mov_b32 v{16+k}, s{80+4*i+k}")
            a(f"buffer_store_dwordx4 v[16:19], v9, s[28:31], s60 offen offset:{16*i}")
            a("s_nop 1")
    a("L_end:\ns_endpgm")
    return wrap(a.text(), 256, 768, LDS_SIZE, 168)

if __name__ == "__main__":
    names = []
    def w(n, **kw):
        open(n + ".s", "w").write(gen(**kw)); names.append(n + ".s")
    w("k3")
    w("k3_st", stamps=True)
    w("k3_t6", T=6, sigH=6, sigA=4, T3=6)
    w("k3_t10", T=10, sigH=8, sigA=6)
    w("k3_s4", sigH=4, sigA=4)
    print(" ".join(names))
```
